```python
import torch

def _softmax(x, axis=-1):
    return torch.softmax(x, dim=axis)

def _gelu(x):
    return torch.nn.functional.gelu(x, approximate='tanh')

def _silu(x):
    return torch.nn.functional.silu(x)

def _sigmoid(x):
    return torch.sigmoid(x)

def _layernorm(x, axis=-1, eps=1e-05):
    m = x.mean(dim=axis, keepdim=True)
    v = x.var(dim=axis, keepdim=True, unbiased=False)
    return (x - m) / torch.sqrt(v + eps)

def _scatter_add(tgt, idx, src, axis=0):
    return tgt.clone().index_add_(axis, idx, src)

def _segment_sum(src, seg, n):
    out = torch.zeros((n,) + src.shape[1:], dtype=src.dtype)
    return out.index_add_(0, seg, src)

def _pad(x, pw):
    flat = tuple((v for pair in reversed(pw) for v in pair))
    return torch.nn.functional.pad(x, flat)
kernel_name = 'adaLN_cond__ssm_conv_s4__dense_activation_relu__prompt'

def setup_inputs():

    _w = lambda a: (lambda t: t.to(torch.bfloat16) if t.is_floating_point() else t)(torch.as_tensor(a))

    def _A_setup():
        B, L, D, N = (1, 2048, 640, 128)
        A_re = -(lambda _x: torch.exp(torch.as_tensor(_x)))((lambda *s: torch.randn(*s, dtype=torch.bfloat16) * 3.2)(D, N))
        A_im = torch.pi * (lambda *s: torch.randn(*s, dtype=torch.bfloat16) * 0.1)(D, N)
        B_re = (lambda *s: torch.randn(*s, dtype=torch.bfloat16) * 0.2)(D, N)
        B_im = (lambda *s: torch.randn(*s, dtype=torch.bfloat16) * 0.2)(D, N)
        C_re = (lambda *s: torch.randn(*s, dtype=torch.bfloat16) * 0.2)(D, N)
        C_im = (lambda *s: torch.randn(*s, dtype=torch.bfloat16) * 0.2)(D, N)
        log_dt = (lambda *s: torch.randn(*s, dtype=torch.bfloat16) * 0.1)(D) * 0.5 - 4.0
        Dskip = (lambda *s: torch.randn(*s, dtype=torch.bfloat16) * 0.2)(D)
        return {'u': _w((lambda *s: torch.randn(*s, dtype=torch.bfloat16) * 0.05)(B, L, D)), 'A_re': _w(A_re), 'A_im': _w(A_im), 'B_re': _w(B_re), 'B_im': _w(B_im), 'C_re': _w(C_re), 'C_im': _w(C_im), 'log_dt': _w(log_dt), 'Dskip': _w(Dskip)}
    _A_in = _A_setup()

    def _B_setup():
        B, S, D, Dff = (1, 2048, 640, 1728)
        return {'x': _w((lambda *s: torch.randn(*s, dtype=torch.bfloat16) * 0.05)(B, S, D)), 'w1': _w((lambda *s: torch.randn(*s, dtype=torch.bfloat16) * 0.05)(D, Dff)), 'w2': _w((lambda *s: torch.randn(*s, dtype=torch.bfloat16) * 0.05)(Dff, D))}
    _B_in = _B_setup()
    return {'A_u': _A_in['u'], 'A_A_re': _A_in['A_re'], 'A_A_im': _A_in['A_im'], 'A_B_re': _A_in['B_re'], 'A_B_im': _A_in['B_im'], 'A_C_re': _A_in['C_re'], 'A_C_im': _A_in['C_im'], 'A_log_dt': _A_in['log_dt'], 'A_Dskip': _A_in['Dskip'], 'B_x': _B_in['x'], 'B_w1': _B_in['w1'], 'B_w2': _B_in['w2'], 'c': _w((lambda *s: torch.randn(*s, dtype=torch.bfloat16) * 0.1)(1, 640) * 8.0), 'w_mod': _w((lambda *s: torch.randn(*s, dtype=torch.bfloat16) * 0.1)(640, 6 * 640) * 640 ** (-0.5) * 8.0)}

def reference(A_u, A_A_re, A_A_im, A_B_re, A_B_im, A_C_re, A_C_im, A_log_dt, A_Dskip, B_x, B_w1, B_w2, c, w_mod):

    def _A_ref(u, A_re, A_im, B_re, B_im, C_re, C_im, log_dt, Dskip):
        Bsz, L, D = u.shape
        dt = torch.exp(log_dt)[:, None]
        A = A_re + 1j * A_im
        Bc = B_re + 1j * B_im
        Cc = C_re + 1j * C_im
        logdA = dt * A
        dB = dt * Bc
        l = (lambda x, dt: x.to(dt))(torch.arange(L), A_re.dtype)
        P = torch.exp(logdA[:, :, None] * l[None, None, :])
        K = torch.einsum('dn,dnl,dn->dl', Cc, P, dB).real
        L2 = 2 * L
        Kp = _pad(K, ((0, 0), (0, L)))
        up = (lambda x, *d: x.permute(*d))(u, 0, 2, 1)
        up = _pad(up, ((0, 0), (0, 0), (0, L)))
        Kf = (lambda x, axes=(-2, -1): torch.fft.rfft2(x.float(), dim=axes))(Kp[:, None, :], axes=(-2, -1))
        Uf = (lambda x, axes=(-2, -1): torch.fft.rfft2(x.float(), dim=axes))(up[:, :, None, :], axes=(-2, -1))
        Yf = Uf * Kf[None, :, :, :]
        y = (lambda x, s, axes=(-2, -1): torch.fft.irfft2(x, s=s, dim=axes).to(torch.bfloat16))(Yf, (1, L2), axes=(-2, -1))[:, :, 0, :L]
        y = (lambda x, *d: x.permute(*d))(y, 0, 2, 1) + u * Dskip[None, None, :]
        return y

    def _B_ref(x, w1, w2):
        h = torch.einsum('bsd,df->bsf', x, w1)
        zero = torch.zeros_like(h)
        h = torch.maximum(h, zero)
        return torch.einsum('bsf,fd->bsd', h, w2)
    x = A_u
    mod = (_silu(c) @ w_mod).reshape(c.shape[0], 6, 1, -1)
    sa, ca, ga, sb, cb, gb = (mod[:, 0].clone(), mod[:, 1].clone(), mod[:, 2].clone(), mod[:, 3].clone(), mod[:, 4].clone(), mod[:, 5].clone())
    h = _layernorm(x, axis=-1) * (1 + ca) + sa
    x = x + ga * _A_ref(h, A_A_re, A_A_im, A_B_re, A_B_im, A_C_re, A_C_im, A_log_dt, A_Dskip)
    h = _layernorm(x, axis=-1) * (1 + cb) + sb
    x = x + gb * _B_ref(h, B_w1, B_w2)
    return x
```

```python
import re
TRANS = ('v_exp_f32','v_log_f32','v_rcp_f32','v_rsq_f32','v_sqrt_f32','v_sin_f32','v_cos_f32','v_rcp_iflag_f32')
def regs_of(tok):
    tok = tok.strip()
    tok = tok.lstrip('-')
    m = re.match(r'^abs\((.*)\)$', tok)
    if m: tok = m.group(1)
    tok = tok.strip('|')
    m = re.match(r'^([vsa])(\d+)$', tok)
    if m: return [(m.group(1), int(m.group(2)))]
    m = re.match(r'^([vsa])\[(\d+):(\d+)\]$', tok)
    if m: return [(m.group(1), i) for i in range(int(m.group(2)), int(m.group(3))+1)]
    if tok in ('vcc',): return [('s',106),('s',107)]
    if tok == 'vcc_lo': return [('s',106)]
    if tok == 'vcc_hi': return [('s',107)]
    if tok == 'exec': return [('exec',0)]
    if tok == 'm0': return [('m0',0)]
    return []
def mfma_info(mn):
    if mn.startswith('v_mfma_f32_16x16x4_f32'): return ('sgemm',8)
    if mn.startswith('v_mfma_f32_32x32x2_f32'): return ('sgemm',16)
    if mn.startswith('v_mfma_f32_16x16x1_4b_f32'): return ('sgemm',8)
    if '32x32x16' in mn or '32x32x8' in mn: return ('xdl',8)
    if '16x16x32' in mn or '16x16x16' in mn: return ('xdl',4)
    raise Exception('unknown mfma '+mn)

class Inst:
    __slots__=('text','mn','dst','src','kind','passes','srcC','isdpp','store_data')
class Asm:
    def __init__(self):
        self.lines=[]
        self.hist=[]
        self.nops=0
    def raw(self, s):
        self.lines.append(s)
    def label(self, name):
        self.lines.append(name+':')
    def comment(self, s): self.lines.append('    ; '+s)
    def parse(self, text):
        I=Inst(); I.text=text
        body=text.split(';')[0].strip()
        parts=body.split(None,1)
        mn=parts[0]; I.mn=mn
        ops=[]
        if len(parts)>1:
            cur='';depth=0
            for ch in parts[1]:
                if ch in '[(': depth+=1
                if ch in '])': depth-=1
                if ch==',' and depth==0: ops.append(cur.strip()); cur=''
                else: cur+=ch
            ops.append(cur.strip())
        mods=''
        if ops:
            sp=ops[-1].split()
            if len(sp)>1:
                ops[-1]=sp[0]; mods=' '.join(sp[1:])
        I.isdpp = ('row_' in mods) or ('quad_perm' in mods) or ('wave_' in mods) or mn.endswith('_dpp')
        I.dst=[];I.src=[];I.srcC=[];I.passes=0;I.store_data=[]
        R=[regs_of(o) for o in ops]
        if mn.startswith('v_mfma'):
            I.kind,I.passes=mfma_info(mn)
            I.dst=R[0]; I.src=R[1]+R[2]; I.srcC=R[3]
        elif mn.startswith('s_'):
            I.kind='salu'
            if mn.startswith('s_cmp') or mn.startswith('s_cbranch') or mn in('s_branch','s_waitcnt','s_barrier','s_nop','s_endpgm','s_setprio','s_sleep'):
                I.src=sum(R,[])
            else:
                I.dst=R[0] if R else []; I.src=sum(R[1:],[])
                if 'saveexec' in mn: I.dst=I.dst+[('exec',0)]
            if mn.startswith('s_load') or mn.startswith('s_buffer_load'): I.kind='smem'
        elif mn.startswith('buffer_store') or mn.startswith('global_store') or mn.startswith('ds_write') or mn.startswith('buffer_atomic') or mn.startswith('global_atomic') or mn.startswith('ds_add'):
            I.kind='vmem' if not mn.startswith('ds_') else 'ds'
            I.src=sum(R,[])
            if mn.startswith('buffer_store'): I.store_data=R[0]
            elif mn.startswith('global_store'): I.store_data=R[1]
            if len(I.store_data)<3: I.store_data=[]
        elif mn.startswith('buffer_load') or mn.startswith('global_load'):
            I.kind='vmem'
            if ' lds' in (' '+mods) or 'lds' in mn:
                I.src=sum(R,[])+[('m0',0)]; I.kind='ldsdma'
            else:
                I.dst=R[0]; I.src=sum(R[1:],[])
        elif mn.startswith('ds_'):
            I.kind='ds'; I.dst=R[0]; I.src=sum(R[1:],[])
        elif mn.startswith('v_'):
            I.kind='trans' if any(mn.startswith(t) for t in TRANS) else 'valu'
            if mn.startswith('v_cmp'):
                I.dst=R[0]; I.src=sum(R[1:],[])
            elif mn.startswith('v_permlane') and 'swap' in mn:
                I.dst=R[0]+R[1]; I.src=R[0]+R[1]
            elif mn.startswith('v_add_co') or mn.startswith('v_sub_co') or mn.startswith('v_addc_co') or mn.startswith('v_subb_co') or mn.startswith('v_mad_u64'):
                I.dst=R[0]+R[1]; I.src=sum(R[2:],[])
            else:
                I.dst=R[0]; I.src=sum(R[1:],[])
                if mn.startswith('v_fmac') or mn.startswith('v_pk_fmac') or mn.startswith('v_dot2c') or I.isdpp or mn.startswith('v_writelane'):
                    I.src=I.src+R[0]
                if mn.startswith('v_cndmask') and len(ops)==3: I.src=I.src+[('s',106),('s',107)]
        else:
            raise Exception('cannot parse '+text)
        return I
    def need(self, I):
        need=0
        dist=0
        isvalu = I.kind in('valu','trans')
        ismfma = I.kind in('xdl','sgemm')
        srcs=set(I.src)|set(I.srcC)
        dsts=set(I.dst)
        for P in reversed(self.hist):
            req=0
            pd=set(P.dst)
            if P.kind in('valu','trans'):
                vg={r for r in pd if r[0]=='v'}
                sg={r for r in pd if r[0]=='s'}
                if P.kind=='trans' and (isvalu or ismfma) and (vg & srcs): req=max(req,1)
                if ismfma and (vg & srcs): req=max(req,2)
                if isvalu and I.isdpp and (vg & set(I.src)): req=max(req,2)
                if isvalu and (I.mn.startswith('v_readlane') or I.mn.startswith('v_readfirstlane')) and (vg & srcs): req=max(req,1)
                if isvalu and I.mn.startswith('v_permlane') and (vg & srcs): req=max(req,2)
                if sg & srcs:
                    if isvalu:
                        req=max(req,2)
                        if I.mn.startswith('v_readlane') or I.mn.startswith('v_writelane'): req=max(req,4)
                    if I.kind in('vmem','ldsdma'): req=max(req,5)
                    if I.kind=='salu': req=max(req,1)
                if ('exec',0) in pd: req=max(req,5)
            if P.kind in('xdl','sgemm'):
                ps=P.passes
                if P.kind=='xdl':
                    tA={2:5,4:8,8:12,16:20}[ps]; tO={2:4,4:6,8:10,16:18}[ps]
                else:
                    tA={2:4,4:6,8:10,16:18}[ps]; tO={2:2,4:4,8:8,16:16}[ps]
                if ismfma:
                    if pd & set(I.src): req=max(req,tA)
                    if pd & set(I.srcC):
                        if list(P.dst)==list(I.srcC) and P.kind==I.kind and ps==I.passes: req=max(req,0)
                        else: req=max(req,tO if P.kind==I.kind else 10)
                    if (pd & dsts) and not (pd & set(I.srcC)): req=max(req,tA)
                else:
                    if (pd & srcs) or (pd & dsts): req=max(req,tA)
                if P.kind=='xdl' and isvalu and (set(P.srcC) & dsts): req=max(req,{2:1,4:3,8:7,16:15}[ps])
            if P.store_data and isvalu and (set(P.store_data)&dsts): req=max(req,2)
            if P.store_data and (not isvalu) and (set(P.store_data)&dsts): req=max(req,1)
            if P.kind=='salu' and ('m0',0) in pd and I.kind=='ldsdma': req=max(req,1)
            if req-dist>need: need=req-dist
            if P.mn=='s_nop': dist+=int(P.text.split()[1])+1
            else: dist+=1
            if dist>24: break
        return need
    def __call__(self, text):
        for t in text.strip().split('\n'):
            t=t.strip()
            if not t or t.startswith(';'):
                continue
            if t.endswith(':'):
                self.label(t[:-1]); continue
            I=self.parse(t)
            m=re.search(r'offset:(\d+)',t)
            if m and (t.startswith('buffer_')) and int(m.group(1))>4095: raise Exception('buffer offset too big: '+t)
            if m and (t.startswith('ds_')) and int(m.group(1))>65535: raise Exception('ds offset too big: '+t)
            for mm in re.finditer(r'offset[01]:(\d+)',t):
                if int(mm.group(1))>255: raise Exception('ds2 offset too big: '+t)
            n=self.need(I)
            while n>0:
                k=min(n,16)
                self.emit_nop(k); n-=k
            self.lines.append('    '+t)
            self.hist.append(I)
            if len(self.hist)>64: self.hist=self.hist[-40:]
    def emit_nop(self,k):
        t='s_nop %d'%(k-1)
        I=self.parse(t); self.lines.append('    '+t+'  ; auto'); self.hist.append(I); self.nops+=1
    def text(self): return '\n'.join(self.lines)+'\n'

def stamp_init(a):
    a("s_load_dwordx2 s[90:91], s[0:1], 120")
    a("s_waitcnt lgkmcnt(0)")
    a("s_mov_b32 s92, s90"); a("s_mov_b32 s93, s91"); a("s_mov_b32 s94, 256"); a("s_mov_b32 s95, 0x00020000")
def stamp(a, i, wg, vtmp="v255"):
    a("s_memtime s[96:97]")
    a("s_waitcnt lgkmcnt(0)")
    a(f"s_cmp_lg_u32 s2, {wg}")
    a(f"s_cbranch_scc1 L_st_{i}_{id(a)%1000}_{len(a.lines)}")
    lbl=a.lines[-1].split()[-1]
    a("s_mov_b64 s[98:99], exec")
    a("v_cmp_eq_u32 vcc, 0, v0")
    a("s_and_b64 exec, exec, vcc")
    a(f"v_mov_b32 {vtmp}, s96")
    a("v_mov_b32 v254, 0")
    a(f"buffer_store_dword {vtmp}, v254, s[92:95], 0 offen offset:{4*i}")
    a("s_mov_b64 exec, s[98:99]")
    a(lbl+":")

def wgstamp(a, slot, nslots=4, base=0x8000000):
    a("s_memrealtime s[96:97]")
    a("s_memtime s[98:99]")
    a("s_waitcnt lgkmcnt(0)")
    a(f"s_add_u32 s92, s36, {base}"); a("s_addc_u32 s93, s37, 0"); a("s_mov_b32 s94, 0x100000"); a("s_mov_b32 s95, 0x00020000")
    a("s_mov_b64 s[90:91], exec")
    a("v_cmp_eq_u32 vcc, 0, v0")
    a("s_and_b64 exec, exec, vcc")
    a("v_mov_b32 v254, s96")
    a("v_mov_b32 v255, s98")
    a(f"s_mul_i32 s97, s2, {nslots*8}")
    a("v_mov_b32 v253, s97")
    a(f"buffer_store_dwordx2 v[254:255], v253, s[92:95], 0 offen offset:{8*slot}")
    a("s_mov_b64 exec, s[90:91]")
```

```python
from asmlib import *
from layout import *

def srd(a, q, pair, off, size):
    a(f"s_add_u32 s{q}, s{pair}, {off & 0xffffffff}")
    a(f"s_addc_u32 s{q+1}, s{pair+1}, {off >> 32}")
    a(f"s_mov_b32 s{q+2}, {size}")
    a(f"s_mov_b32 s{q+3}, 0x00020000")

def rb(a, dst, src):
    a(f"v_cvt_pk_bf16_f32 {dst}, {src}, {src}")
    a(f"v_and_b32 {dst}, 0xffff0000, {dst}")

def wave_sum(a, regs):
    for sh in (1,2,4,8):
        for r in regs:
            a(f"v_add_f32_dpp {r}, {r}, {r} row_shr:{sh} row_mask:0xf bank_mask:0xf bound_ctrl:0")
    for r in regs:
        a(f"v_add_f32_dpp {r}, {r}, {r} row_bcast:15 row_mask:0xa bank_mask:0xf")
    for r in regs:
        a(f"v_add_f32_dpp {r}, {r}, {r} row_bcast:31 row_mask:0xc bank_mask:0xf")

NLN=64; NMOD=30; NKG=320
K1_GRID=NLN+NMOD+NKG

def gen_k1(a):
    a.raw(".p2align 8")
    a.raw("prep_kernel:")
    a(f"s_cmp_ge_u32 s2, {K1_GRID}")
    a("s_cbranch_scc1 L_k1_end")
    a("s_load_dwordx16 s[16:31], s[0:1], 0")
    a("s_load_dwordx4 s[32:35], s[0:1], 96")
    a("s_load_dwordx2 s[36:37], s[0:1], 128")
    a("v_lshrrev_b32 v1, 6, v0")
    a("v_and_b32 v2, 63, v0")
    a("v_readfirstlane_b32 s3, v1")
    a("s_waitcnt lgkmcnt(0)")
    a(f"s_cmp_lt_u32 s2, {NLN}")
    a("s_cbranch_scc1 L_k1_ln")
    a(f"s_cmp_lt_u32 s2, {NLN+NMOD}")
    a("s_cbranch_scc1 L_k1_mod")
    import os
    only=os.environ.get('ONLY','')
    if only in('','kgen'): gen_kgen(a)
    a("s_branch L_k1_end")
    a("L_k1_ln:")
    if only in('','ln'): gen_ln1(a)
    a("s_branch L_k1_end")
    a("L_k1_mod:")
    if only in('','mod'): gen_mod(a)
    a("L_k1_end:")
    a("s_endpgm")

def gen_ln1(a):
    srd(a, 40, 16, 0, 2048*640*2)
    srd(a, 44, 36, WS_NT, 640*2048*2)
    srd(a, 48, 36, WS_XT, 640*2048*2)
    a("s_lshl_b32 s4, s2, 5")
    a("s_lshl_b32 s5, s3, 3")
    a("s_add_u32 s4, s4, s5")
    a("s_mul_i32 s5, s4, 1280")
    a("v_lshlrev_b32 v3, 2, v2")
    RAW=10
    XF=50
    for tt in range(8):
        for k in range(5):
            a(f"buffer_load_dword v{RAW+tt*5+k}, v3, s[40:43], s5 offen offset:{k*256}")
        if tt<7: a("s_add_u32 s5, s5, 1280")
    SUM=130
    for tt in range(8):
        a(f"s_waitcnt vmcnt({(7-tt)*5})")
        for k in range(5):
            a(f"v_lshlrev_b32 v{XF+tt*10+2*k}, 16, v{RAW+tt*5+k}")
            a(f"v_and_b32 v{XF+tt*10+2*k+1}, 0xffff0000, v{RAW+tt*5+k}")
        a(f"v_add_f32 v{SUM+tt}, v{XF+tt*10}, v{XF+tt*10+1}")
        for e in range(2,10):
            a(f"v_add_f32 v{SUM+tt}, v{SUM+tt}, v{XF+tt*10+e}")
    wave_sum(a, [f"v{SUM+tt}" for tt in range(8)])
    for tt in range(8):
        a(f"v_readlane_b32 s{60+tt}, v{SUM+tt}, 63")
    MEAN=138
    a("s_mov_b32 s6, 0x3acccccd")
    a("v_mov_b32 v4, s6")
    for tt in range(8):
        a(f"v_mul_f32 v{MEAN+tt}, s{60+tt}, v4")
    VAR=146
    for tt in range(8):
        a(f"v_sub_f32 v5, v{XF+tt*10}, v{MEAN+tt}")
        a(f"v_mul_f32 v{VAR+tt}, v5, v5")
        for e in range(1,10):
            a(f"v_sub_f32 v{5+(e&1)}, v{XF+tt*10+e}, v{MEAN+tt}")
            a(f"v_fmac_f32 v{VAR+tt}, v{5+(e&1)}, v{5+(e&1)}")
    wave_sum(a, [f"v{VAR+tt}" for tt in range(8)])
    for tt in range(8):
        a(f"v_readlane_b32 s{60+tt}, v{VAR+tt}, 63")
    DEN=154; RD=162
    for tt in range(8):
        v=f"v{VAR+tt}"; den=f"v{DEN+tt}"; rd=f"v{RD+tt}"
        a(f"v_mul_f32 {v}, s{60+tt}, v4")
        rb(a, v, v)
        a(f"v_add_f32 {v}, 0x3727c5ac, {v}")
        rb(a, v, v)
        a(f"v_sqrt_f32 {den}, {v}")
        a(f"v_rcp_f32 {rd}, {den}")
        a(f"v_fma_f32 v5, -{den}, {den}, {v}")
        a(f"v_mul_f32 {rd}, 0.5, {rd}")
        a(f"v_fmac_f32 {den}, v5, {rd}")
        rb(a, den, den)
        a(f"v_rcp_f32 {rd}, {den}")
        a(f"v_fma_f32 v5, -{den}, {rd}, 1.0")
        a(f"v_fmac_f32 {rd}, v5, {rd}")
        rb(a, f"v{MEAN+tt}", f"v{MEAN+tt}")
    a("v_lshlrev_b32 v3, 13, v2")
    a("s_lshl_b32 s5, s4, 1")
    out=[170,178]
    for e in range(10):
        k=e>>1; e2=e&1
        NP=out[e&1]; XP=NP+4
        for tp in range(4):
            t0_=2*tp; t1_=2*tp+1
            x0=f"v{XF+t0_*10+e}"; x1=f"v{XF+t1_*10+e}"
            a(f"v_cvt_pk_bf16_f32 v{XP+tp}, {x0}, {x1}")
            a(f"v_sub_f32 v5, {x0}, v{MEAN+t0_}")
            a(f"v_sub_f32 v6, {x1}, v{MEAN+t1_}")
            a(f"v_cvt_pk_bf16_f32 v7, v5, v6")
            a(f"v_lshlrev_b32 v5, 16, v7")
            a(f"v_and_b32 v6, 0xffff0000, v7")
            a(f"v_mul_f32 v7, v5, v{RD+t0_}")
            a(f"v_mul_f32 v8, v6, v{RD+t1_}")
            a(f"v_fma_f32 v5, -v7, v{DEN+t0_}, v5")
            a(f"v_fma_f32 v6, -v8, v{DEN+t1_}, v6")
            a(f"v_fmac_f32 v7, v5, v{RD+t0_}")
            a(f"v_fmac_f32 v8, v6, v{RD+t1_}")
            a(f"v_cvt_pk_bf16_f32 v{NP+tp}, v7, v8")
        a(f"s_add_u32 s7, s5, {k*128*4096+e2*4096}")
        a(f"buffer_store_dwordx4 v[{NP}:{NP+3}], v3, s[44:47], s7 offen")
        a(f"buffer_store_dwordx4 v[{XP}:{XP+3}], v3, s[48:51], s7 offen")

def gen_mod(a):
    srd(a, 40, 32, 0, 1280)
    srd(a, 44, 34, 0, 640*3840*2)
    srd(a, 48, 36, WS_MOD, 3840*4)
    a(f"s_sub_u32 s4, s2, {NLN}")
    a("v_and_b32 v3, 15, v0")
    a("v_lshrrev_b32 v4, 4, v0")
    a("s_mov_b32 s6, 307200")
    a("v_mul_lo_u32 v5, v4, s6")
    a("v_lshlrev_b32 v6, 4, v3")
    a("v_add_u32 v5, v5, v6")
    a("s_lshl_b32 s5, s4, 8")
    W=60
    a("v_lshlrev_b32 v6, 1, v0")
    for i in range(3):
        a(f"buffer_load_ushort v{10+i}, v6, s[40:43], 0 offen offset:{i*512}")
    for r in range(40):
        a(f"buffer_load_dwordx4 v[{W+4*r}:{W+4*r+3}], v5, s[44:47], s5 offen")
        if r<39: a("s_add_u32 s5, s5, 7680")
    a("s_waitcnt vmcnt(40)")
    a("s_mov_b32 s6, 0xbfb8aa3b")
    a("v_lshlrev_b32 v7, 2, v0")
    for i in range(3):
        x=f"v{10+i}"
        a(f"v_lshlrev_b32 {x}, 16, {x}")
        a(f"v_mul_f32 v13, s6, {x}")
        a("v_exp_f32 v13, v13")
        a("v_add_f32 v13, 1.0, v13")
        a("v_rcp_f32 v14, v13")
        a("v_fma_f32 v15, -v13, v14, 1.0")
        a("v_fmac_f32 v14, v15, v14")
        a(f"v_mul_f32 v15, {x}, v14")
        a(f"v_fma_f32 v16, -v15, v13, {x}")
        a("v_fmac_f32 v15, v16, v14")
        rb(a,"v15","v15")
        a(f"ds_write_b32 v7, v15 offset:{i*1024}")
    a("s_waitcnt lgkmcnt(0)")
    a("s_barrier")
    a("v_mul_u32_u24 v8, 160, v4")
    SC=16
    for i in range(10):
        a(f"ds_read_b128 v[{SC+4*i}:{SC+4*i+3}], v8 offset:{16*i}")
    ACC=2
    ACC=220
    for e in range(8): a(f"v_mov_b32 v{ACC+e}, 0")
    a("s_waitcnt lgkmcnt(0)")
    for r in range(40):
        a(f"s_waitcnt vmcnt({39-r})")
        for j in range(4):
            w=f"v{W+4*r+j}"
            a(f"v_lshlrev_b32 v10, 16, {w}")
            a(f"v_and_b32 v11, 0xffff0000, {w}")
            a(f"v_fmac_f32 v{ACC+2*j}, v10, v{SC+r}")
            a(f"v_fmac_f32 v{ACC+2*j+1}, v11, v{SC+r}")
    a("v_lshlrev_b32 v8, 9, v4")
    a("v_lshlrev_b32 v9, 5, v3")
    a("v_add_u32 v8, v8, v9")
    a(f"ds_write_b128 v8, v[{ACC}:{ACC+3}] offset:4096")
    a(f"ds_write_b128 v8, v[{ACC+4}:{ACC+7}] offset:4112")
    a("s_waitcnt lgkmcnt(0)")
    a("s_barrier")
    a("v_cmp_gt_u32 vcc, 128, v0")
    a("s_and_saveexec_b64 s[8:9], vcc")
    a("s_cbranch_execz L_k1_mod_done")
    a("v_lshlrev_b32 v8, 2, v0")
    for r in range(16):
        a(f"ds_read_b32 v{20+r}, v8 offset:{4096+r*512}")
    a("s_waitcnt lgkmcnt(0)")
    for r in range(1,16):
        a(f"v_add_f32 v20, v20, v{20+r}")
    rb(a,"v20","v20")
    a("s_lshl_b32 s5, s4, 9")
    a("buffer_store_dword v20, v8, s[48:51], s5 offen")
    a("L_k1_mod_done:")
    a("s_mov_b64 exec, s[8:9]")

def gen_kgen(a):
    import os
    ST=os.environ.get('STAMP')
    if ST: wgstamp(a,0)
    a(f"s_sub_u32 s4, s2, {NLN+NMOD}")
    a("s_lshl_b32 s4, s4, 2")
    a("s_add_u32 s4, s4, s3")
    a("s_lshr_b32 s5, s4, 1")
    a("s_and_b32 s6, s4, 1")
    for i in range(6):
        srd(a, 40+4*i, 18+2*i, 0, 640*128*2)
    srd(a, 64, 30, 0, 1280)
    srd(a, 68, 36, WS_KTAB, 640*KT_STRIDE*4)
    a("s_lshl_b32 s7, s5, 8")
    a("v_lshlrev_b32 v3, 2, v2")
    for i in range(6):
        a(f"buffer_load_dword v{10+i}, v3, s[{40+4*i}:{43+4*i}], s7 offen")
    a("s_lshl_b32 s7, s5, 1")
    a("v_mov_b32 v4, 0")
    a("buffer_load_ushort v16, v4, s[64:67], s7 offen")
    a("s_waitcnt vmcnt(0)")

    a("v_lshlrev_b32 v16, 16, v16")
    a("s_mov_b32 s8, 0x3fb8aa3b")
    a("s_mov_b32 s9, 0x32a57060")
    a("v_mul_f32 v17, s8, v16")
    a("v_fma_f32 v18, v16, s8, -v17")
    a("v_mov_b32 v19, s9")
    a("v_fmac_f32 v18, v16, v19")
    a("v_exp_f32 v17, v17")
    a("v_mul_f32 v18, 0x3f317218, v18")
    a("v_fmac_f32 v17, v17, v18")
    rb(a,"v17","v17")
    a("v_lshlrev_b32 v5, 5, v2")
    a("s_lshl_b32 s7, s3, 11")
    a("v_add_u32 v5, s7, v5")
    for e in range(2):
        def up(dst,src):
            if e==0: a(f"v_lshlrev_b32 {dst}, 16, {src}")
            else: a(f"v_and_b32 {dst}, 0xffff0000, {src}")
        for i in range(6): up(f"v{20+i}", f"v{10+i}")
        a("v_mul_f32 v20, v17, v20")
        a("v_mul_f32 v21, v17, v21")
        a("v_mul_f32 v22, v17, v22")
        a("v_mul_f32 v23, v17, v23")
        a("v_mul_f32 v28, s8, v20")
        a("v_mul_f32 v29, 0.15915494, v21")
        a("v_mul_f32 v30, v24, v22")
        a("v_fma_f32 v30, -v25, v23, v30")
        a("v_mul_f32 v31, v24, v23")
        a("v_fmac_f32 v31, v25, v22")
        a(f"ds_write_b128 v5, v[28:31] offset:{16*e}")
    a("v_and_b32 v6, 15, v2")
    a("v_lshrrev_b32 v7, 4, v2")
    a("v_cmp_gt_u32 vcc, 8, v6")
    a("v_mov_b32 v8, 16")
    a("v_cndmask_b32 v8, v6, v8, vcc")
    a("s_cmp_eq_u32 s6, 0")
    a("s_cselect_b64 vcc, -1, 0")
    a("v_cndmask_b32 v8, v8, v6, vcc")
    a("v_cvt_f32_u32 v8, v8")
    a("v_cvt_f32_u32 v9, v6")
    a("s_cselect_b32 s11, 1.0, 4.0")
    a("v_mul_f32 v8, s11, v8")
    a("v_mul_f32 v8, 0x41800000, v8")
    a("v_mul_f32 v9, s11, v9")
    a("v_lshlrev_b32 v5, 4, v7")
    a("v_add_u32 v5, s7, v5")
    for r in range(8): a(f"v_mov_b32 v{40+r}, 0")
    a("s_waitcnt lgkmcnt(0)")
    P=[50,54]
    if ST: wgstamp(a,1)
    a(f"ds_read_b128 v[{P[0]}:{P[0]+3}], v5 offset:0")
    for q in range(32):
        p=P[q&1]; pn=P[(q+1)&1]
        if q<31:
            a(f"ds_read_b128 v[{pn}:{pn+3}], v5 offset:{64*(q+1)}")
            a("s_waitcnt lgkmcnt(1)")
        else:
            a("s_waitcnt lgkmcnt(0)")
        ar2=f"v{p}"; air=f"v{p+1}"; cbr=f"v{p+2}"; cbi=f"v{p+3}"
        a(f"v_mul_f32 v60, {ar2}, v8")
        a(f"v_mul_f32 v61, {air}, v8")
        a(f"v_mul_f32 v62, {ar2}, v9")
        a(f"v_mul_f32 v63, {air}, v9")
        a("v_exp_f32 v60, v60")
        a("v_fract_f32 v61, v61")
        a("v_exp_f32 v62, v62")
        a("v_fract_f32 v63, v63")
        a("v_cos_f32 v64, v61")
        a("v_sin_f32 v65, v61")
        a("v_cos_f32 v66, v63")
        a("v_sin_f32 v67, v63")
        a("v_mul_f32 v64, v60, v64")
        a("v_mul_f32 v65, v60, v65")
        a("v_mul_f32 v66, v62, v66")
        a("v_mul_f32 v67, v62, v67")
        a(f"v_mul_f32 v68, {cbr}, v64")
        a(f"v_mul_f32 v69, {cbr}, v65")
        a(f"v_fma_f32 v68, -{cbi}, v65, v68")
        a(f"v_fma_f32 v69, -{cbi}, v64, -v69")
        a("v_mul_f32 v70, v65, v65")
        a("v_mul_f32 v71, v64, v65")
        a("v_mul_f32 v72, v67, v67")
        a("v_mul_f32 v73, v66, v67")
        a("v_mfma_f32_16x16x4_f32 v[40:43], v68, v66, v[40:43]")
        a("v_fma_f32 v70, v64, v64, -v70")
        a("v_add_f32 v71, v71, v71")
        a("v_fma_f32 v72, v66, v66, -v72")
        a("v_add_f32 v73, v73, v73")
        a("v_mfma_f32_16x16x4_f32 v[40:43], v69, v67, v[40:43]")
        a(f"v_mul_f32 v74, {cbr}, v70")
        a(f"v_mul_f32 v75, {cbr}, v71")
        a(f"v_fma_f32 v74, -{cbi}, v71, v74")
        a(f"v_fma_f32 v75, -{cbi}, v70, -v75")
        a("v_mfma_f32_16x16x4_f32 v[44:47], v74, v72, v[44:47]")
        a("v_mfma_f32_16x16x4_f32 v[44:47], v75, v73, v[44:47]")
    if ST: wgstamp(a,2)
    for r in range(8):
        x=f"v{40+r}"
        a(f"v_cvt_pk_bf16_f32 v60, {x}, {x}")
        a("v_and_b32 v60, 0xffff0000, v60")
        a(f"v_sub_f32 v60, {x}, v60")
        a(f"v_cvt_pk_bf16_f32 {x}, v60, {x}")
    a("v_lshlrev_b32 v3, 8, v7")
    a("v_lshlrev_b32 v4, 2, v6")
    a("v_add_u32 v3, v3, v4")
    a(f"s_mul_i32 s7, s5, {KT_STRIDE*4}")
    a("s_lshl_b32 s8, s6, 10")
    a("s_add_u32 s7, s7, s8")
    a("s_mov_b64 s[12:13], exec")
    a("s_cmp_eq_u32 s6, 0")
    a("s_cbranch_scc1 L_kg_p0")
    a("s_mov_b64 exec, 1")
    a("buffer_store_dword v44, v3, s[68:71], s7 offen offset:1536")
    a("s_mov_b32 exec_lo, 0")
    a("s_mov_b32 exec_hi, -1")
    a("L_kg_p0:")
    for r in range(4):
        a(f"buffer_store_dword v{40+r}, v3, s[68:71], s7 offen offset:{64*r}")
    a("s_mov_b32 exec_lo, 0")
    a("s_mov_b32 exec_hi, -1")
    for r in range(4):
        a(f"buffer_store_dword v{44+r}, v3, s[68:71], s7 offen offset:{512+64*r}")
    a("s_mov_b64 exec, s[12:13]")
    if ST:
        a("s_waitcnt vmcnt(0)")
        wgstamp(a,3)
```

```python
from asmlib import *
from layout import *
from k1 import srd, rb
GRID=160; BLOCK=256; VGPR=256
UCS=4256; KOFF=4*UCS; KBS=160; WSZ=KOFF+79*KBS+32
import os
ST=os.environ.get('STAMP')
LDS=WSZ*4

def gen_k2(a):
    a.raw(".p2align 8")
    a.raw("conv_kernel:")
    a(f"s_cmp_ge_u32 s2, {GRID}")
    a("s_cbranch_scc1 L_k2_end")
    a("s_load_dwordx2 s[16:17], s[0:1], 64")
    a("s_load_dwordx2 s[36:37], s[0:1], 128")
    a("v_lshrrev_b32 v1, 6, v0")
    a("v_and_b32 v2, 63, v0")
    a("v_readfirstlane_b32 s3, v1")
    a("s_lshl_b32 s4, s2, 2")
    a("s_add_u32 s4, s4, s3")
    a("s_waitcnt lgkmcnt(0)")
    srd(a, 40, 36, WS_NT, 640*2048*2)
    srd(a, 44, 36, WS_XT, 640*2048*2)
    srd(a, 48, 36, WS_KTAB, 640*KT_STRIDE*4)
    srd(a, 52, 36, WS_X1T, 640*2048*2)
    srd(a, 56, 16, 0, 1280)
    a("s_lshl_b32 s5, s4, 2")
    a("s_add_u32 s6, s36, s5")
    a("s_addc_u32 s7, s37, 0")
    a("s_load_dword s60, s[6:7], 0")
    a("s_load_dword s61, s[6:7], 2560")
    a("s_load_dword s62, s[6:7], 5120")
    a("s_lshl_b32 s8, s4, 12")
    a(f"s_mul_i32 s9, s4, {KT_STRIDE*4}")
    a(f"s_mul_i32 s10, s3, {WSZ}")
    a("v_lshlrev_b32 v3, 4, v2")
    NR=10
    NX=190
    if ST: wgstamp(a,0)
    for c in range(4):
        a(f"buffer_load_dwordx4 v[{NR+4*c}:{NR+4*c+3}], v3, s[40:43], s8 offen offset:{1024*c}")
        a(f"buffer_load_dwordx2 v[{NX+2*c}:{NX+2*c+1}], v3, s[40:43], s8 offen offset:{1024*c+16}")
    a("v_mov_b32 v4, 0")
    a("s_lshl_b32 s11, s4, 1")
    a("buffer_load_ushort v9, v4, s[56:59], s11 offen")
    a("v_lshrrev_b32 v4, 2, v2")
    a("v_and_b32 v5, 3, v2")
    a("v_lshlrev_b32 v6, 5, v4")
    a("v_lshl_add_u32 v6, v5, 3, v6")
    a("v_add_u32 v6, 7, v6")
    a("s_mov_b32 s12, 0xfffef600")
    KR=30
    for ci in range(4):
        a(f"v_add_u32 v7, {512*ci}, v6")
        a("v_cvt_f32_u32 v8, v7")
        for ep in range(4):
            e=2*ep
            a(f"v_subrev_f32 v62, {float(e)}, v8")
            a(f"v_subrev_f32 v63, {float(e+1)}, v8")
            a("v_cvt_pk_bf16_f32 v64, v62, v63")
            a("v_and_b32 v62, 0xffff, v64")
            a("v_lshrrev_b32 v63, 16, v64")
            a("v_lshl_add_u32 v62, v62, 2, s12")
            a("v_lshl_add_u32 v63, v63, 2, s12")
            if ci==0:
                a(f"v_subrev_u32 v64, {e}, v7")
                a(f"v_subrev_u32 v65, {e+1}, v7")
                a("v_cmp_gt_u32 vcc, 128, v64")
                a("v_lshlrev_b32 v64, 2, v64")
                a("v_cndmask_b32 v62, v62, v64, vcc")
                a("v_cmp_gt_u32 vcc, 128, v65")
                a("v_lshlrev_b32 v65, 2, v65")
                a("v_cndmask_b32 v63, v63, v65, vcc")
            a(f"buffer_load_dword v{KR+8*ci+e}, v62, s[48:51], s9 offen")
            a(f"buffer_load_dword v{KR+8*ci+e+1}, v63, s[48:51], s9 offen")
    a("v_and_b32 v66, 15, v2")
    a("v_lshrrev_b32 v67, 4, v2")
    a("v_lshlrev_b32 v68, 6, v66")
    a("v_lshl_add_u32 v68, v67, 3, v68")
    XR=70
    for cb in range(4):
        for hh in range(2):
            r=XR+(cb*2+hh)*2
            a(f"buffer_load_dwordx2 v[{r}:{r+1}], v68, s[44:47], s8 offen offset:{1024*cb+32*hh}")
    for r in range(4): a(f"v_mov_b32 v{90+r}, 0")
    a("v_add_u32 v69, s10, v3")
    for cp in range(4):
        a(f"ds_write_b128 v69, v[90:93] offset:{cp*UCS}")
    for i in range(3):
        a(f"ds_write_b128 v69, v[90:93] offset:{KOFF+1024*i}")
    a("s_waitcnt lgkmcnt(0)")
    a("v_mov_b32 v94, s61")
    a("v_add_f32 v94, 1.0, v94")
    rb(a,"v94","v94")
    a("v_mov_b32 v95, s60")
    a("s_waitcnt vmcnt(41)")
    for c in range(4):
        W6=[f"v{NR+4*c+j}" for j in range(4)]+[f"v{NX+2*c}",f"v{NX+2*c+1}"]
        for j in range(6):
            w=W6[j]
            a(f"v_lshlrev_b32 v96, 16, {w}")
            a(f"v_and_b32 v97, 0xffff0000, {w}")
            a("v_mul_f32 v96, v96, v94")
            a("v_mul_f32 v97, v97, v94")
            a("v_cvt_pk_bf16_f32 v98, v96, v97")
            a("v_lshlrev_b32 v96, 16, v98")
            a("v_and_b32 v97, 0xffff0000, v98")
            a("v_add_f32 v96, v96, v95")
            a("v_add_f32 v97, v97, v95")
            a(f"v_cvt_pk_bf16_f32 {w}, v96, v97")
        a(f"ds_write_b128 v69, v[{NR+4*c}:{NR+4*c+3}] offset:{64+1024*c}")
        for k in range(4): a(f"v_alignbit_b32 v{96+k}, {W6[k+1]}, {W6[k]}, 16")
        a(f"ds_write_b128 v69, v[96:99] offset:{UCS+64+1024*c}")
        for k in range(4): a(f"v_mov_b32 v{100+k}, {W6[k+1]}")
        a(f"ds_write_b128 v69, v[100:103] offset:{2*UCS+64+1024*c}")
        for k in range(4): a(f"v_alignbit_b32 v{96+k}, {W6[k+2]}, {W6[k+1]}, 16")
        a(f"ds_write_b128 v69, v[96:99] offset:{3*UCS+64+1024*c}")
        if c==0:
            a(f"v_lshlrev_b32 v99, 16, {W6[0]}")
            a(f"v_alignbit_b32 v103, {W6[1]}, {W6[0]}, 16")
            a("v_mov_b32 v102, v99")
            a("s_mov_b64 exec, 1")
            a(f"ds_write_b32 v69, v99 offset:{UCS+60}")
            a(f"ds_write_b32 v69, {W6[0]} offset:{2*UCS+60}")
            a(f"ds_write_b64 v69, v[102:103] offset:{3*UCS+56}")
            a("s_mov_b64 exec, -1")
    a("s_mov_b32 s13, 0x07060302")
    a("s_mov_b32 s14, 0x05040100")
    a(f"v_mul_u32_u24 v7, {KBS}, v4")
    a("v_lshl_add_u32 v7, v5, 4, v7")
    a("v_add_u32 v7, s10, v7")
    for ci in range(4):
        a(f"s_waitcnt vmcnt({8+8*(3-ci)})")
        for ep in range(4):
            w0=f"v{KR+8*ci+2*ep}"; w1=f"v{KR+8*ci+2*ep+1}"
            a(f"v_perm_b32 v{96+ep}, {w1}, {w0}, s13")
            a(f"v_perm_b32 v{100+ep}, {w1}, {w0}, s14")
        off=KOFF+(16*ci+15)*KBS
        a(f"ds_write_b128 v7, v[96:99] offset:{off}")
        a(f"ds_write_b128 v7, v[100:103] offset:{off+64}")
    a("v_lshlrev_b32 v4, 1, v66")
    a("v_lshlrev_b32 v5, 4, v67")
    a("v_sub_u32 v4, v4, v5")
    a("v_add_u32 v4, 50, v4")
    a("v_add_u32 v4, s10, v4")
    a("v_add_u32 v7, 1, v66")
    a("v_and_b32 v7, 3, v7")
    a(f"v_mul_u32_u24 v7, {UCS-2}, v7")
    a("v_add_u32 v4, v4, v7")
    a(f"v_mul_u32_u24 v6, {KBS}, v66")
    a("v_add_u32 v6, v6, v5")
    a(f"v_add_u32 v6, {KOFF}, v6")
    a("v_add_u32 v6, s10, v6")
    ACC=104
    for r in range(32): a(f"v_mov_b32 v{ACC+r}, 0")
    a("s_waitcnt lgkmcnt(0)")
    if ST: wgstamp(a,1)
    ABUF=[136,144,152]
    BBUF=[160,168,176,184]
    steps=[(dl,cb) for dl in range(64) for cb in range(dl>>4,4)]
    issued=[]
    def issue(i):
        dl,cb=steps[i]
        if cb==(dl>>4):
            ab=ABUF[dl%3]
            if dl%16==0 and dl>0: a("v_add_u32 v4, 1024, v4")
            o=(64*(dl%16))//8
            a(f"ds_read2_b64 v[{ab}:{ab+3}], v4 offset0:{o} offset1:{o+1}"); issued.append(('A',dl,0))
            a(f"ds_read2_b64 v[{ab+4}:{ab+7}], v4 offset0:{o+4} offset1:{o+5}"); issued.append(('A',dl,1))
        bb=BBUF[i%4]
        sg=16*cb-dl
        a(f"ds_read_b128 v[{bb}:{bb+3}], v6 offset:{(sg+15)*KBS}"); issued.append(('B',i,0))
        a(f"ds_read_b128 v[{bb+4}:{bb+7}], v6 offset:{(sg+15)*KBS+64}"); issued.append(('B',i,1))
    PF=3
    for i in range(PF): issue(i)
    for i,(dl,cb) in enumerate(steps):
        last=issued.index(('B',i,1))
        n_after=len(issued)-1-last
        a(f"s_waitcnt lgkmcnt({n_after})")
        ab=ABUF[dl%3]; bb=BBUF[i%4]
        for hh in range(2):
            acc=ACC+(cb*2+hh)*4
            a(f"v_mfma_f32_16x16x32_bf16 v[{acc}:{acc+3}], v[{ab+4*hh}:{ab+4*hh+3}], v[{bb}:{bb+3}], v[{acc}:{acc+3}]")
        for hh in range(2):
            acc=ACC+(cb*2+hh)*4
            a(f"v_mfma_f32_16x16x32_bf16 v[{acc}:{acc+3}], v[{ab+4*hh}:{ab+4*hh+3}], v[{bb+4}:{bb+7}], v[{acc}:{acc+3}]")
        if i+PF<len(steps): issue(i+PF)
    if ST: wgstamp(a,2)
    a("v_add_u32 v5, s10, v68")
    HR=136
    for cb in range(4):
        for hh in range(2):
            r=HR+(cb*2+hh)*2
            a(f"ds_read_b64 v[{r}:{r+1}], v5 offset:{64+1024*cb+32*hh}")
    a("s_waitcnt vmcnt(0)")
    a("v_lshlrev_b32 v9, 16, v9")
    a("v_mov_b32 v8, s62")
    a("s_waitcnt lgkmcnt(0)")
    for cb in range(4):
        for hh in range(2):
            k=cb*2+hh
            acc=ACC+k*4
            for pr in range(2):
                hw=f"v{HR+2*k+pr}"; xw=f"v{XR+2*k+pr}"
                a(f"v_cvt_pk_bf16_f32 v90, v{acc+2*pr}, v{acc+2*pr+1}")
                a(f"v_lshlrev_b32 v92, 16, {hw}")
                a(f"v_and_b32 v93, 0xffff0000, {hw}")
                a("v_mul_f32 v92, v92, v9")
                a("v_mul_f32 v93, v93, v9")
                a("v_cvt_pk_bf16_f32 v94, v92, v93")
                a("v_lshlrev_b32 v91, 16, v90")
                a("v_and_b32 v90, 0xffff0000, v90")
                a("v_lshlrev_b32 v92, 16, v94")
                a("v_and_b32 v93, 0xffff0000, v94")
                a("v_add_f32 v92, v92, v91")
                a("v_add_f32 v93, v93, v90")
                a("v_cvt_pk_bf16_f32 v94, v92, v93")
                a("v_lshlrev_b32 v92, 16, v94")
                a("v_and_b32 v93, 0xffff0000, v94")
                a("v_mul_f32 v92, v92, v8")
                a("v_mul_f32 v93, v93, v8")
                a("v_cvt_pk_bf16_f32 v94, v92, v93")
                a("v_lshlrev_b32 v92, 16, v94")
                a("v_and_b32 v93, 0xffff0000, v94")
                a(f"v_lshlrev_b32 v90, 16, {xw}")
                a(f"v_and_b32 v91, 0xffff0000, {xw}")
                a("v_add_f32 v92, v92, v90")
                a("v_add_f32 v93, v93, v91")
                a(f"v_cvt_pk_bf16_f32 {xw}, v92, v93")
            r=XR+2*k
            a(f"buffer_store_dwordx2 v[{r}:{r+1}], v68, s[52:55], s8 offen offset:{1024*cb+32*hh}")
    if ST:
        a("s_waitcnt vmcnt(0)")
        wgstamp(a,3)
    a("L_k2_end:")
    a("s_endpgm")
```

```python
from asmlib import *
from layout import *
from k1 import srd, rb, wave_sum
GRID=256; BLOCK=320; LDS=1024; VGPR=96

def gen(a):
    a.raw(".p2align 8")
    a.raw("ln2_kernel:")
    a(f"s_cmp_ge_u32 s2, {GRID}")
    a("s_cbranch_scc1 L_k25_end")
    a("s_load_dwordx2 s[36:37], s[0:1], 128")
    a("v_lshrrev_b32 v1, 6, v0")
    a("v_readfirstlane_b32 s3, v1")
    a("s_waitcnt lgkmcnt(0)")
    srd(a, 40, 36, WS_X1T, 640*2048*2)
    srd(a, 44, 36, WS_MOD, 3840*4)
    srd(a, 48, 36, WS_H2, 640*2048*2)
    a("v_lshlrev_b32 v2, 13, v0")
    a("s_lshl_b32 s4, s2, 4")
    a("buffer_load_dwordx4 v[4:7], v2, s[40:43], s4 offen")
    a("v_add_u32 v3, 4096, v2")
    a("buffer_load_dwordx4 v[8:11], v3, s[40:43], s4 offen")
    a("v_lshlrev_b32 v3, 3, v0")
    a(f"s_movk_i32 s5, {3*2560}")
    a(f"buffer_load_dwordx2 v[12:13], v3, s[44:47], s5 offen")
    a(f"s_movk_i32 s5, {4*2560}")
    a(f"buffer_load_dwordx2 v[14:15], v3, s[44:47], s5 offen")
    XF=20
    a("s_waitcnt vmcnt(2)")
    for row in range(2):
        for j in range(4):
            w=f"v{4+4*row+j}"
            a(f"v_lshlrev_b32 v{XF+8*row+2*j}, 16, {w}")
            a(f"v_and_b32 v{XF+8*row+2*j+1}, 0xffff0000, {w}")
    S=40
    for tt in range(8): a(f"v_add_f32 v{S+tt}, v{XF+tt}, v{XF+8+tt}")
    def reduce_all(S, ldsoff, OUT):
        wave_sum(a,[f"v{S+tt}" for tt in range(8)])
        a("s_lshl_b32 s6, s3, 5")
        a("v_mov_b32 v16, s6")
        a("s_mov_b32 exec_lo, 0")
        a("s_mov_b32 exec_hi, 0x80000000")
        a(f"ds_write_b128 v16, v[{S}:{S+3}] offset:{ldsoff}")
        a(f"ds_write_b128 v16, v[{S+4}:{S+7}] offset:{ldsoff+16}")
        a("s_mov_b64 exec, -1")
        a("s_waitcnt lgkmcnt(0)")
        a("s_barrier")
        a("v_mov_b32 v16, 0")
        T=56
        for w in range(5):
            a(f"ds_read_b128 v[{T+8*w}:{T+8*w+3}], v16 offset:{ldsoff+32*w}")
            a(f"ds_read_b128 v[{T+8*w+4}:{T+8*w+7}], v16 offset:{ldsoff+32*w+16}")
        a("s_waitcnt lgkmcnt(0)")
        for tt in range(8):
            a(f"v_add_f32 v{OUT+tt}, v{T+tt}, v{T+8+tt}")
            a(f"v_add_f32 v{T+16+tt}, v{T+16+tt}, v{T+24+tt}")
            a(f"v_add_f32 v{OUT+tt}, v{OUT+tt}, v{T+32+tt}")
            a(f"v_add_f32 v{OUT+tt}, v{OUT+tt}, v{T+16+tt}")
            a(f"v_mul_f32 v{OUT+tt}, 0x3acccccd, v{OUT+tt}")
    MEAN=48
    reduce_all(S,0,MEAN)
    for tt in range(8):
        a(f"v_sub_f32 v16, v{XF+tt}, v{MEAN+tt}")
        a(f"v_sub_f32 v17, v{XF+8+tt}, v{MEAN+tt}")
        a(f"v_mul_f32 v{S+tt}, v16, v16")
        a(f"v_fmac_f32 v{S+tt}, v17, v17")
    VAR=40
    reduce_all(S,256,VAR)
    DEN=56; RD=64
    for tt in range(8):
        v=f"v{VAR+tt}"; den=f"v{DEN+tt}"; rd=f"v{RD+tt}"
        rb(a, v, v)
        a(f"v_add_f32 {v}, 0x3727c5ac, {v}")
        rb(a, v, v)
        a(f"v_sqrt_f32 {den}, {v}")
        a(f"v_rcp_f32 {rd}, {den}")
        a(f"v_fma_f32 v16, -{den}, {den}, {v}")
        a(f"v_mul_f32 {rd}, 0.5, {rd}")
        a(f"v_fmac_f32 {den}, v16, {rd}")
        rb(a, den, den)
        a(f"v_rcp_f32 {rd}, {den}")
        a(f"v_fma_f32 v16, -{den}, {rd}, 1.0")
        a(f"v_fmac_f32 {rd}, v16, {rd}")
        rb(a, f"v{MEAN+tt}", f"v{MEAN+tt}")
    a("s_waitcnt vmcnt(0)")
    a("v_add_f32 v14, 1.0, v14")
    a("v_add_f32 v15, 1.0, v15")
    a("v_cvt_pk_bf16_f32 v16, v14, v15")
    a("v_lshlrev_b32 v14, 16, v16")
    a("v_and_b32 v15, 0xffff0000, v16")
    a("v_lshlrev_b32 v3, 2, v0")
    a("s_mul_i32 s6, s2, 10240")
    for tt in range(8):
        x0=f"v{XF+tt}"; x1=f"v{XF+8+tt}"
        a(f"v_sub_f32 v16, {x0}, v{MEAN+tt}")
        a(f"v_sub_f32 v17, {x1}, v{MEAN+tt}")
        a("v_cvt_pk_bf16_f32 v18, v16, v17")
        a("v_lshlrev_b32 v16, 16, v18")
        a("v_and_b32 v17, 0xffff0000, v18")
        a(f"v_mul_f32 v18, v16, v{RD+tt}")
        a(f"v_mul_f32 v19, v17, v{RD+tt}")
        a(f"v_fma_f32 v16, -v18, v{DEN+tt}, v16")
        a(f"v_fma_f32 v17, -v19, v{DEN+tt}, v17")
        a(f"v_fmac_f32 v18, v16, v{RD+tt}")
        a(f"v_fmac_f32 v19, v17, v{RD+tt}")
        a("v_cvt_pk_bf16_f32 v18, v18, v19")
        a("v_lshlrev_b32 v16, 16, v18")
        a("v_and_b32 v17, 0xffff0000, v18")
        a("v_mul_f32 v16, v16, v14")
        a("v_mul_f32 v17, v17, v15")
        a("v_cvt_pk_bf16_f32 v18, v16, v17")
        a("v_lshlrev_b32 v16, 16, v18")
        a("v_and_b32 v17, 0xffff0000, v18")
        a("v_add_f32 v16, v16, v12")
        a("v_add_f32 v17, v17, v13")
        a(f"v_cvt_pk_bf16_f32 v{72+tt}, v16, v17")
        a(f"buffer_store_dword v{72+tt}, v3, s[48:51], s6 offen offset:{1280*tt if tt<4 else 1280*(tt-4)}")
        if tt==3: a("s_add_u32 s6, s6, 5120")
    a("L_k25_end:")
    a("s_endpgm")
```

```python
from asmlib import *
from layout import *
from k1 import srd, rb
import os
ST=os.environ.get('STAMP')
G1_NT=14; G1_TT=16
G1_GRID=G1_NT*G1_TT; G1_BLOCK=256; G1_STAGE=32768; G1_RING=3; G1_LDS=G1_STAGE*G1_RING; G1_VGPR=160

def gen_g1(a):
    a.raw(".p2align 8")
    a.raw("gemm1_kernel:")
    a(f"s_cmp_ge_u32 s2, {G1_GRID}")
    a("s_cbranch_scc1 L_g1_end")
    a("s_load_dwordx2 s[16:17], s[0:1], 80")
    a("s_load_dwordx2 s[36:37], s[0:1], 128")
    a("v_lshrrev_b32 v1, 6, v0")
    a("v_and_b32 v2, 63, v0")
    a("v_readfirstlane_b32 s3, v1")
    a("s_mul_hi_u32 s5, s2, 306783379")
    a("s_mul_i32 s6, s5, 14")
    a("s_sub_u32 s4, s2, s6")
    a("s_waitcnt lgkmcnt(0)")
    srd(a, 40, 16, 0, 640*1728*2)
    srd(a, 44, 36, WS_H2, 2048*640*2)
    srd(a, 48, 36, WS_HID, 2048*1728*2)
    a("v_lshrrev_b32 v3, 4, v2")
    a("v_and_b32 v4, 15, v2")
    for jj in range(4):
        f_hi=((jj>>1)&1)<<2
        a("v_lshrrev_b32 v5, 1, v4")
        a(f"v_or_b32 v6, {f_hi}, v3")
        a("v_xor_b32 v5, v5, v6")
        a("v_lshlrev_b32 v5, 1, v5")
        a("v_and_b32 v6, 1, v4")
        a("v_or_b32 v5, v5, v6")
        a("v_lshlrev_b32 v5, 4, v5")
        a(f"v_add_u32 v6, {4*jj}, v3")
        a("s_lshl_b32 s7, s3, 4")
        a("v_add_u32 v6, s7, v6")
        a("s_movk_i32 s7, 3456")
        a("v_mul_lo_u32 v6, v6, s7")
        a(f"v_add_u32 v{10+jj}, v5, v6")
    a("s_lshl_b32 s8, s4, 8")
    a("v_lshrrev_b32 v3, 3, v2")
    a("v_and_b32 v4, 7, v2")
    a("v_xor_b32 v5, v4, v3")
    a("v_lshlrev_b32 v5, 4, v5")
    for jj in range(4):
        a(f"v_add_u32 v6, {8*jj}, v3")
        a("s_lshl_b32 s7, s3, 5")
        a("v_add_u32 v6, s7, v6")
        a("v_mul_u32_u24 v6, 1280, v6")
        a(f"v_add_u32 v{14+jj}, v5, v6")
    a("s_mul_i32 s9, s5, 163840")
    a("s_lshl_b32 s10, s3, 12")
    def dma(step):
        st=(step%G1_RING)*G1_STAGE
        for jj in range(4):
            a(f"s_add_u32 m0, s10, {st+jj*1024}")
            a(f"buffer_load_dwordx4 v{10+jj}, s[40:43], s8 offen lds")
        for jj in range(4):
            a(f"s_add_u32 m0, s10, {st+16384+jj*1024}")
            a(f"buffer_load_dwordx4 v{14+jj}, s[44:47], s9 offen lds")
        a(f"s_add_u32 s8, s8, {64*3456}")
        a("s_add_u32 s9, s9, 128")
    dma(0); dma(1)
    a("v_lshrrev_b32 v3, 4, v2")
    a("v_and_b32 v4, 15, v2")
    a("v_lshrrev_b32 v5, 2, v4")
    a("v_and_b32 v6, 3, v4")
    a("v_and_b32 v7, 1, v3")
    a("v_lshl_or_b32 v7, v7, 2, v5")
    a("v_lshl_add_u32 v8, v3, 3, v5")
    a("v_lshlrev_b32 v8, 8, v8")
    a("v_lshl_add_u32 v8, v6, 3, v8")
    a("s_and_b32 s11, s3, 1")
    a("s_lshl_b32 s11, s11, 2")
    for nb in range(4):
        a(f"s_add_u32 s7, s11, {nb}")
        a("v_xor_b32 v9, s7, v7")
        a(f"v_lshl_add_u32 v{20+nb}, v9, 5, v8")
    a("s_lshr_b32 s12, s3, 1")
    a("s_lshl_b32 s12, s12, 13")
    a("v_and_b32 v5, 7, v4")
    a("v_lshlrev_b32 v8, 7, v4")
    a("v_add_u32 v8, s12, v8")
    for kk in range(2):
        a(f"v_or_b32 v9, {4*kk}, v3")
        a("v_xor_b32 v9, v9, v5")
        a(f"v_lshl_add_u32 v{24+kk}, v9, 4, v8")
    for i in range(6): a(f"v_add_u32 v{26+i}, 0x10000, v{20+i}")
    ACC=32
    for r in range(64): a(f"v_mov_b32 v{ACC+r}, 0")
    FA=[96,112]; FB=[128,144]
    NSTEP=10
    for step in range(NSTEP):
        st=(step%G1_RING)*G1_STAGE
        a(f"s_waitcnt vmcnt({8 if step<NSTEP-1 else 0})")
        a("s_barrier")
        if step+2<NSTEP: dma(step+2)
        ab=20
        if st>=65536: ab=26; st-=65536
        for kk in range(2):
            for nb in range(4):
                r=FA[kk]+4*nb
                a(f"ds_read_b64_tr_b16 v[{r}:{r+1}], v{ab+nb} offset:{st+kk*8192}")
                a(f"ds_read_b64_tr_b16 v[{r+2}:{r+3}], v{ab+nb} offset:{st+kk*8192+1024}")
            for tb in range(4):
                r=FB[kk]+4*tb
                a(f"ds_read_b128 v[{r}:{r+3}], v{ab+4+kk} offset:{st+16384+tb*2048}")
        for kk in range(2):
            a(f"s_waitcnt lgkmcnt({12 if kk==0 else 0})")
            for nb in range(4):
                for tb in range(4):
                    acc=ACC+(nb*4+tb)*4
                    a(f"v_mfma_f32_16x16x32_bf16 v[{acc}:{acc+3}], v[{FA[kk]+4*nb}:{FA[kk]+4*nb+3}], v[{FB[kk]+4*tb}:{FB[kk]+4*tb+3}], v[{acc}:{acc+3}]")
    a("v_mul_u32_u24 v8, 3456, v4")
    a("v_lshl_add_u32 v8, v3, 3, v8")
    a("s_lshl_b32 s7, s5, 7")
    a("s_lshr_b32 s12, s3, 1")
    a("s_lshl_b32 s12, s12, 6")
    a("s_add_u32 s7, s7, s12")
    a("s_mul_i32 s7, s7, 3456")
    a("s_lshl_b32 s12, s4, 8")
    a("s_add_u32 s7, s7, s12")
    a("s_and_b32 s12, s3, 1")
    a("s_lshl_b32 s13, s12, 7")
    a("s_add_u32 s7, s7, s13")
    a("s_cmp_eq_u32 s4, 13")
    a("s_cselect_b32 s13, s12, 0")
    a("s_cmp_lg_u32 s13, 0")
    a("s_cbranch_scc1 L_g1_end")
    for tb in range(4):
        for nb in range(4):
            acc=ACC+(nb*4+tb)*4
            for r in range(4): a(f"v_max_f32 v{acc+r}, 0, v{acc+r}")
            a(f"v_cvt_pk_bf16_f32 v{acc}, v{acc}, v{acc+1}")
            a(f"v_cvt_pk_bf16_f32 v{acc+1}, v{acc+2}, v{acc+3}")
            a(f"buffer_store_dwordx2 v[{acc}:{acc+1}], v8, s[48:51], s7 offen offset:{32*nb}")
        if tb<3: a(f"s_add_u32 s7, s7, {16*3456}")
    a("L_g1_end:")
    a("s_endpgm")

G2_GRID=256; G2_BLOCK=256; G2_STAGE=9216; G2_RING=4; G2_WSZ=G2_STAGE*G2_RING; G2_LDS=G2_WSZ*4; G2_VGPR=200
def gen_g2(a):
    a.raw(".p2align 8")
    a.raw("gemm2_kernel:")
    a(f"s_cmp_ge_u32 s2, {G2_GRID}")
    a("s_cbranch_scc1 L_g2_end")
    a("s_load_dwordx2 s[16:17], s[0:1], 88")
    a("s_load_dwordx2 s[18:19], s[0:1], 112")
    a("s_load_dwordx2 s[36:37], s[0:1], 128")
    a("v_lshrrev_b32 v1, 6, v0")
    a("v_and_b32 v2, 63, v0")
    a("v_readfirstlane_b32 s3, v1")
    a("s_and_b32 s4, s2, 7")
    a("s_lshr_b32 s5, s2, 3")
    a("s_waitcnt lgkmcnt(0)")
    srd(a, 40, 16, 0, 1728*640*2)
    srd(a, 44, 36, WS_HID, 2048*1728*2)
    srd(a, 48, 18, 0, 2048*640*2)
    srd(a, 52, 36, WS_X1T, 640*2048*2)
    srd(a, 56, 36, WS_MOD, 3840*4)
    for j in range(5):
        a(f"v_add_u32 v3, {64*j}, v2")
        a("v_mul_u32_u24 v4, 205, v3")
        a("v_lshrrev_b32 v4, 11, v4")
        a("v_mul_u32_u24 v5, 10, v4")
        a("v_sub_u32 v5, v3, v5")
        a("v_and_b32 v6, 0x13, v4")
        a("v_bfe_u32 v7, v4, 2, 1")
        a("v_lshl_or_b32 v6, v7, 3, v6")
        a("v_bfe_u32 v7, v4, 3, 1")
        a("v_lshl_or_b32 v6, v7, 2, v6")
        a("v_mul_u32_u24 v6, 1280, v6")
        a(f"v_lshl_add_u32 v{10+j}, v5, 4, v6")
    a(f"s_mul_i32 s8, s3, {14*32*1280}")
    a("s_mul_i32 s7, s4, 160")
    a("s_add_u32 s8, s8, s7")
    a("v_lshrrev_b32 v3, 2, v2")
    a("v_and_b32 v4, 3, v2")
    a("v_lshrrev_b32 v5, 2, v3")
    a("v_sub_u32 v5, 0, v5")
    a("v_and_b32 v5, 3, v5")
    a("v_xor_b32 v5, v5, v4")
    a("s_movk_i32 s7, 3456")
    for j in range(4):
        a(f"v_add_u32 v6, {16*j}, v3")
        a("v_mul_lo_u32 v6, v6, s7")
        a(f"v_lshl_add_u32 v{15+j}, v5, 4, v6")
    a(f"s_mul_i32 s9, s5, {64*3456}")
    a(f"s_mul_i32 s7, s3, {14*64}")
    a("s_add_u32 s9, s9, s7")
    a(f"s_mul_i32 s10, s3, {G2_WSZ}")
    NSTEP=14
    def dma(step):
        st=(step%G2_RING)*G2_STAGE
        for j in range(5):
            a(f"s_add_u32 m0, s10, {st+j*1024}")
            a(f"buffer_load_dwordx4 v{10+j}, s[40:43], s8 offen lds")
        for j in range(4):
            a(f"s_add_u32 m0, s10, {st+5120+j*1024}")
            a(f"buffer_load_dwordx4 v{15+j}, s[44:47], s9 offen lds")
        a(f"s_add_u32 s8, s8, {32*1280}")
        a("s_add_u32 s9, s9, 64")
    a("v_lshrrev_b32 v3, 4, v2")
    a("v_and_b32 v4, 15, v2")
    a("v_lshlrev_b32 v5, 14, v3")
    a("v_lshl_add_u32 v5, v4, 1, v5")
    a(f"s_mul_i32 s11, s4, {80*4096}")
    a("s_lshl_b32 s12, s5, 7")
    a("s_add_u32 s11, s11, s12")
    a("s_lshl_b32 s12, s3, 5")
    a("s_add_u32 s11, s11, s12")
    XR=160
    for nb in range(5):
        for r in range(4):
            a(f"s_add_u32 s12, s11, {(16*nb+r)*4096}")
            a(f"buffer_load_ushort v{XR+4*nb+r}, v5, s[52:55], s12 offen")
    GB=180
    a("v_lshlrev_b32 v5, 4, v3")
    a(f"s_mul_i32 s12, s4, 320")
    a(f"s_add_u32 s12, s12, {5*2560}")
    for nb in range(5):
        a(f"buffer_load_dwordx4 v[{GB+4*nb}:{GB+4*nb+3}], v5, s[56:59], s12 offen offset:{64*nb}")
    for s_ in range(3): dma(s_)
    a("v_lshrrev_b32 v5, 2, v4")
    a("v_and_b32 v6, 3, v4")
    a("v_lshrrev_b32 v7, 1, v3")
    a("v_lshlrev_b32 v7, 4, v7")
    a("v_and_b32 v8, 1, v3")
    a("v_lshl_add_u32 v7, v8, 2, v7")
    a("v_add_u32 v7, v7, v5")
    a("v_mul_u32_u24 v7, 160, v7")
    a("v_lshl_add_u32 v7, v6, 3, v7")
    a("v_add_u32 v20, s10, v7")
    a("v_sub_u32 v5, 0, v5")
    a("v_and_b32 v5, 3, v5")
    a("v_xor_b32 v5, v5, v3")
    a("v_lshlrev_b32 v7, 6, v4")
    a("v_lshl_add_u32 v7, v5, 4, v7")
    a("v_add_u32 v21, s10, v7")
    ACC=32
    for r in range(80): a(f"v_mov_b32 v{ACC+r}, 0")
    FA=112
    FB=132
    for step in range(NSTEP):
        st=(step%G2_RING)*G2_STAGE
        rem=min(NSTEP-1-step,2)
        a(f"s_waitcnt vmcnt({9*rem})")
        for nb in range(5):
            r=FA+4*nb
            a(f"ds_read_b64_tr_b16 v[{r}:{r+1}], v20 offset:{st+32*nb}")
            a(f"ds_read_b64_tr_b16 v[{r+2}:{r+3}], v20 offset:{st+32*nb+8*160}")
        for tb in range(4):
            r=FB+4*tb
            a(f"ds_read_b128 v[{r}:{r+3}], v21 offset:{st+5120+tb*1024}")
        a("s_waitcnt lgkmcnt(0)")
        if step+3<NSTEP: dma(step+3)
        for nb in range(5):
            for tb in range(4):
                acc=ACC+(nb*4+tb)*4
                a(f"v_mfma_f32_16x16x32_bf16 v[{acc}:{acc+3}], v[{FA+4*nb}:{FA+4*nb+3}], v[{FB+4*tb}:{FB+4*tb+3}], v[{acc}:{acc+3}]")
    a("s_barrier")
    a("v_lshlrev_b32 v5, 4, v2")
    a("s_mul_i32 s12, s3, 20480")
    a("v_add_u32 v6, s12, v5")
    for tb in range(4):
        for nb in range(5):
            acc=ACC+(nb*4+tb)*4
            a(f"ds_write_b128 v6, v[{acc}:{acc+3}] offset:{(tb*5+nb)*1024}")
    a("s_waitcnt lgkmcnt(0)")
    a("s_barrier")
    a("s_mul_i32 s12, s3, 5120")
    a("v_add_u32 v6, s12, v5")
    a("v_add_u32 v7, 0xa000, v6")
    R=32
    for w in range(4):
        for nb in range(5):
            r=R+(w*5+nb)*4
            a(f"ds_read_b128 v[{r}:{r+3}], v{6+(w>>1)} offset:{(w&1)*20480+nb*1024}")
    a("s_waitcnt lgkmcnt(0)")
    for nb in range(5):
        for r in range(4):
            x=R+nb*4+r
            a(f"v_add_f32 v{x}, v{x}, v{x+20}")
            a(f"v_add_f32 v{x+40}, v{x+40}, v{x+60}")
            a(f"v_add_f32 v{x}, v{x}, v{x+40}")
    a("v_mul_u32_u24 v8, 1280, v4")
    a("v_lshl_add_u32 v8, v3, 3, v8")
    a("s_lshl_b32 s7, s5, 6")
    a("s_lshl_b32 s12, s3, 4")
    a("s_add_u32 s7, s7, s12")
    a("s_mul_i32 s7, s7, 1280")
    a("s_mul_i32 s12, s4, 160")
    a("s_add_u32 s7, s7, s12")
    for nb in range(5):
        for pr in range(2):
            x=R+nb*4+2*pr
            g0=GB+4*nb+2*pr; xr=XR+4*nb+2*pr
            a(f"v_cvt_pk_bf16_f32 v10, v{x}, v{x+1}")
            a("v_lshlrev_b32 v11, 16, v10")
            a("v_and_b32 v12, 0xffff0000, v10")
            a(f"v_mul_f32 v11, v11, v{g0}")
            a(f"v_mul_f32 v12, v12, v{g0+1}")
            a("v_cvt_pk_bf16_f32 v10, v11, v12")
            a("v_lshlrev_b32 v11, 16, v10")
            a("v_and_b32 v12, 0xffff0000, v10")
            a(f"v_lshlrev_b32 v{xr}, 16, v{xr}")
            a(f"v_lshlrev_b32 v{xr+1}, 16, v{xr+1}")
            a(f"v_add_f32 v11, v11, v{xr}")
            a(f"v_add_f32 v12, v12, v{xr+1}")
            a(f"v_cvt_pk_bf16_f32 v{14+pr}, v11, v12")
        a(f"buffer_store_dwordx2 v[14:15], v8, s[48:51], s7 offen offset:{32*nb}")
        a("s_nop 1")
    a("L_g2_end:")
    a("s_endpgm")
```

```python
import sys, importlib
from asmlib import *
from layout import *
import k1
HEADER = open('adaLN_cond__ssm_conv_s4__dense_activation_relu__prompt.s.ref').read().split('; Override launch')[0]

def desc(name, vgpr, sgpr=102):
    acc=(vgpr+3)//4*4
    return f""".amdhsa_kernel {name}
  .amdhsa_next_free_vgpr {vgpr}
  .amdhsa_next_free_sgpr {sgpr}
  .amdhsa_accum_offset {acc}
  .amdhsa_group_segment_fixed_size 0
  .amdhsa_kernarg_size 136
  .amdhsa_user_sgpr_count 2
  .amdhsa_user_sgpr_kernarg_segment_ptr 1
  .amdhsa_system_sgpr_workgroup_id_x 1
  .amdhsa_float_denorm_mode_32 3
  .amdhsa_float_denorm_mode_16_64 3
.end_amdhsa_kernel
"""
def build(kernels, out):
    s=HEADER
    for (name,fn,grid,block,lds,vg) in kernels:
        s+=f"; @launch kernel={name} grid=({grid},1,1) block=({block},1,1) lds={lds}\n"
    s+='.amdgcn_target "amdgcn-amd-amdhsa--gfx950"\n.text\n'
    seen=[]
    for (name,fn,grid,block,lds,vg) in kernels:
        if name in seen: continue
        seen.append(name)
        a=Asm()
        a.raw(f".globl {name}")
        a.raw(f".type {name},@function")
        fn(a)
        s+=a.text()
        print(name,'lines',len(a.lines),'auto nops',a.nops)
    s+='.section .rodata,"a"\n.p2align 6\n'
    seen=[]
    for (name,fn,grid,block,lds,vg) in kernels:
        if name in seen: continue
        seen.append(name)
        s+=".p2align 6\n"+desc(name,vg)
    open(out,'w').write(s)

if __name__=='__main__':
    n=int(sys.argv[1]) if len(sys.argv)>1 else 99
    out=sys.argv[2] if len(sys.argv)>2 else 'k.s'
    ks=[('prep_kernel',k1.gen_k1,k1.K1_GRID,256,12288,256)]
    try:
        import k2; ks.append(('conv_kernel',k2.gen_k2,k2.GRID,k2.BLOCK,k2.LDS,k2.VGPR))
        import k25; ks.append(('ln2_kernel',k25.gen,k25.GRID,k25.BLOCK,k25.LDS,k25.VGPR))
        import k34
        ks.append(('gemm1_kernel',k34.gen_g1,k34.G1_GRID,k34.G1_BLOCK,k34.G1_LDS,k34.G1_VGPR))
        ks.append(('gemm2_kernel',k34.gen_g2,k34.G2_GRID,k34.G2_BLOCK,k34.G2_LDS,k34.G2_VGPR))
    except ImportError as e:
        print('partial',e)
    build(ks[:n],out)
```
